```python
import torch

def _softmax(x, axis=-1):
    return torch.softmax(x, dim=axis)
def _gelu(x):
    return torch.nn.functional.gelu(x, approximate="tanh")
def _silu(x):
    return torch.nn.functional.silu(x)
def _sigmoid(x):
    return torch.sigmoid(x)
def _layernorm(x, axis=-1, eps=1e-5):
    m = x.mean(dim=axis, keepdim=True)
    v = x.var(dim=axis, keepdim=True, unbiased=False)
    return (x - m) / torch.sqrt(v + eps)
def _scatter_add(tgt, idx, src, axis=0):
    return tgt.clone().index_add_(axis, idx, src)
def _segment_sum(src, seg, n):
    out = torch.zeros((n,) + src.shape[1:], dtype=src.dtype)
    return out.index_add_(0, seg, src)
def _pad(x, pw):
    flat = tuple(v for pair in reversed(pw) for v in pair)
    return torch.nn.functional.pad(x, flat)

kernel_name = 'concat_heads__grouped_kv_mqa__compressed_kv_cla__prompt'

def setup_inputs():

    _w = (lambda a: (lambda t: t.to(torch.bfloat16) if t.is_floating_point() else t)(torch.as_tensor(a)))
    def _A_setup():
        B, S, D, H = 1, 2048, 512, 32
        Dh = D // H
        return {
            "x": _w((lambda *s: torch.randn(*s, dtype=torch.bfloat16) * 0.05)(B, S, D)),
            "wq": _w((lambda *s: torch.randn(*s, dtype=torch.bfloat16) * 0.8)(D, H * Dh)),
            "wk": _w((lambda *s: torch.randn(*s, dtype=torch.bfloat16) * 0.8)(D, Dh)),
            "wv": _w((lambda *s: torch.randn(*s, dtype=torch.bfloat16) * 0.05)(D, Dh)),
            "wo": _w((lambda *s: torch.randn(*s, dtype=torch.bfloat16) * 0.05)(H * Dh, D)),
        }
    _A_in = _A_setup()

    def _B_setup():
        B, H, Sq, Sk, D, M = 1, 32, 2048, 2048, 128, 512
        Dc = 4 * D
        return {
            "x": _w((lambda *s: torch.randn(*s, dtype=torch.bfloat16) * 3.2)(B, Sq, M)),
            "c_kv": _w((lambda *s: torch.randn(*s, dtype=torch.bfloat16) * 0.1)(B, Sk, Dc)),
            "w_q": _w((lambda *s: torch.randn(*s, dtype=torch.bfloat16) * 6.4)(M, H, D) * (M ** -0.5)),
            "w_uk": _w((lambda *s: torch.randn(*s, dtype=torch.bfloat16) * 6.4)(Dc, H, D) * (Dc ** -0.5)),
            "w_uv": _w((lambda *s: torch.randn(*s, dtype=torch.bfloat16) * 0.1)(Dc, H, D) * (Dc ** -0.5)),
            "w_o": _w((lambda *s: torch.randn(*s, dtype=torch.bfloat16) * 0.1)(H, D, M) * ((H * D) ** -0.5)),
        }
    _B_in = _B_setup()

    return {
        "A_x": _A_in["x"],
        "A_wq": _A_in["wq"],
        "A_wk": _A_in["wk"],
        "A_wv": _A_in["wv"],
        "A_wo": _A_in["wo"],
        "B_x": _B_in["x"],
        "B_c_kv": _B_in["c_kv"],
        "B_w_q": _B_in["w_q"],
        "B_w_uk": _B_in["w_uk"],
        "B_w_uv": _B_in["w_uv"],
        "B_w_o": _B_in["w_o"],
    }

def reference(A_x, A_wq, A_wk, A_wv, A_wo, B_x, B_c_kv, B_w_q, B_w_uk, B_w_uv, B_w_o):
    def _A_ref(x, wq, wk, wv, wo):
        B, S, D = x.shape
        H = 32
        Dh = D // H
        q = (lambda x, *d: x.permute(*d))((x @ wq).reshape(B, S, H, Dh), 0, 2, 1, 3)
        k = x @ wk
        v = x @ wv
        scores = torch.einsum("bhqd,bkd->bhqk", q, k) * (Dh ** -0.5)
        p = _softmax(scores, axis=-1)
        o = torch.einsum("bhqk,bkd->bhqd", p, v)
        return (lambda x, *d: x.permute(*d))(o, 0, 2, 1, 3).reshape(B, S, H * Dh) @ wo

    def _B_ref(x, c_kv, w_q, w_uk, w_uv, w_o):
        B, Sq, M = x.shape[0], x.shape[1], x.shape[2]
        Sk = c_kv.shape[1]
        H, D = w_q.shape[1], w_q.shape[2]
        q = torch.einsum("bqm,mhd->bhqd", x, w_q)
        k = torch.einsum("bkc,chd->bhkd", c_kv, w_uk)
        v = torch.einsum("bkc,chd->bhkd", c_kv, w_uv)
        scores = torch.einsum("bhqd,bhkd->bhqk", q, k) * (D ** -0.5)
        off = Sk - Sq
        qi = torch.arange(Sq)[:, None]
        kj = torch.arange(Sk)[None, :]
        cmask = kj <= (qi + off)
        scores = torch.where(cmask[None, None], scores, -1e9)
        p = _softmax(scores, axis=-1)
        ctx = torch.einsum("bhqk,bhkd->bhqd", p, v)
        return torch.einsum("bhqd,hdm->bqm", ctx, w_o)

    a = _A_ref(A_x, A_wq, A_wk, A_wv, A_wo)
    b = _B_ref(B_x, B_c_kv, B_w_q, B_w_uk, B_w_uv, B_w_o)
    return torch.concatenate([a, b], axis=-1)
```

```python
import sys

class Asm:
    def __init__(self):
        self.lines = []
    def __call__(self, s):
        import re
        m = re.search(r"offset:(\d+)", s)
        if m:
            lim = 4096 if s.startswith("buffer") else 65536
            assert int(m.group(1)) < lim, s
        self.lines.append("    " + s)
    def label(self, s):
        self.lines.append(s + ":")
    def comment(self, s):
        self.lines.append("    ; " + s)
    def text(self):
        return "\n".join(self.lines) + "\n"

A_X, A_WQ, A_WK, A_WV, A_WO, B_X, B_CKV, B_WQ, B_WUK, B_WUV, B_WO, D_OUT, D_DBG, D_WS = [8 * i for i in range(14)]

MB = 1 << 20
WS_QB, WS_KB, WS_VB, WS_OB = 0, 16 * MB, 32 * MB, 48 * MB
WS_QA, WS_OA = 64 * MB, 66 * MB
WS_KA, WS_VA = 68 * MB, 69 * MB
WS_SIZE = 256 * MB

def kernel_header(a, name):
    a.lines.append(f".globl {name}\n.p2align 8\n.type {name},@function\n{name}:")

def kernel_desc(name, vgpr, sgpr=102, accum=None):
    if accum is None:
        accum = (vgpr + 3) // 4 * 4
    return f""".section .rodata,"a"
.p2align 6
.amdhsa_kernel {name}
  .amdhsa_next_free_vgpr {vgpr}
  .amdhsa_next_free_sgpr {sgpr}
  .amdhsa_accum_offset {accum}
  .amdhsa_group_segment_fixed_size 0
  .amdhsa_kernarg_size 112
  .amdhsa_user_sgpr_count 2
  .amdhsa_user_sgpr_kernarg_segment_ptr 1
  .amdhsa_system_sgpr_workgroup_id_x 1
.end_amdhsa_kernel
.text
"""

def srd(a, dst, ptr_lo, nbytes):
    a(f"s_mov_b32 s{dst}, s{ptr_lo}")
    a(f"s_and_b32 s{dst+1}, s{ptr_lo+1}, 0xffff")
    a(f"s_mov_b32 s{dst+2}, {nbytes}")
    a(f"s_mov_b32 s{dst+3}, 0x00020000")

def gen_proj(a):
    name = "proj_kernel"
    kernel_header(a, name)
    a("s_cmp_ge_u32 s2, 1632")
    a("s_cbranch_scc1 proj_exit")
    a("s_load_dwordx16 s[36:51], s[0:1], 0")
    a("s_load_dwordx8 s[52:59], s[0:1], 64")
    a("s_load_dwordx4 s[60:63], s[0:1], 96")
    a("v_lshrrev_b32 v1, 6, v0")
    a("v_and_b32 v0, 63, v0")
    a("s_nop 0")
    a("v_readfirstlane_b32 s16, v1")
    a("s_waitcnt lgkmcnt(0)")
    P = lambda off: 36 + off // 4
    a("s_and_b32 s17, s16, 1")
    a("s_lshr_b32 s18, s16, 1")
    a("s_and_b32 s30, s2, 511")
    a("s_and_b32 s31, s30, 31")
    a("s_lshr_b32 s32, s30, 5")
    a("s_mov_b32 s21, 8192")
    a("s_mov_b32 s33, 0x400000")
    a("s_mov_b32 s29, 2")
    a("s_cmp_lt_u32 s2, 512")
    a("s_cbranch_scc1 proj_j0")
    a("s_cmp_lt_u32 s2, 1024")
    a("s_cbranch_scc1 proj_j1")
    a("s_cmp_lt_u32 s2, 1536")
    a("s_cbranch_scc1 proj_j2")
    a("s_cmp_lt_u32 s2, 1600")
    a("s_cbranch_scc1 proj_j3")
    a("s_cmp_lt_u32 s2, 1616")
    a("s_cbranch_scc1 proj_j4")
    a("s_sub_u32 s32, s2, 1616")
    a("s_mov_b32 s31, 0")
    a(f"s_mov_b64 s[64:65], s[{P(A_WV)}:{P(A_WV)+1}]")
    a(f"s_mov_b64 s[66:67], s[{P(A_X)}:{P(A_X)+1}]")
    a("s_mov_b32 s21, 32")
    a("s_mov_b32 s33, 16384")
    a("s_mov_b32 s22, 0")
    a(f"s_mov_b32 s23, {WS_VA}")
    a("s_mov_b32 s24, 2048")
    a("s_mov_b32 s25, 0")
    a("s_mov_b32 s26, 1024")
    a("s_mov_b32 s29, 0")
    a("s_branch proj_go")
    a.label("proj_j4")
    a("s_sub_u32 s32, s2, 1600")
    a("s_mov_b32 s31, 0")
    a(f"s_mov_b64 s[64:65], s[{P(A_WK)}:{P(A_WK)+1}]")
    a(f"s_mov_b64 s[66:67], s[{P(A_X)}:{P(A_X)+1}]")
    a("s_mov_b32 s21, 32")
    a("s_mov_b32 s33, 16384")
    a("s_mov_b32 s22, 1")
    a(f"s_mov_b32 s23, {WS_KA}")
    a("s_mov_b32 s24, 1024")
    a("s_mov_b32 s25, 0")
    a("s_mov_b32 s26, 0")
    a("s_mov_b32 s29, 1")
    a("s_branch proj_go")
    a.label("proj_j3")
    a("s_sub_u32 s30, s2, 1536")
    a("s_and_b32 s31, s30, 3")
    a("s_lshr_b32 s32, s30, 2")
    a(f"s_mov_b64 s[64:65], s[{P(A_WQ)}:{P(A_WQ)+1}]")
    a(f"s_mov_b64 s[66:67], s[{P(A_X)}:{P(A_X)+1}]")
    a("s_mov_b32 s21, 1024")
    a("s_mov_b32 s33, 0x80000")
    a("s_mov_b32 s22, 1")
    a("s_lshl_b32 s23, s31, 13")
    a(f"s_add_u32 s23, s23, {WS_QA}")
    a("s_mov_b32 s24, 32768")
    a("s_mov_b32 s25, 2048")
    a("s_mov_b32 s26, 1024")
    a("s_branch proj_go")
    a.label("proj_j2")
    a(f"s_mov_b64 s[64:65], s[{P(B_WUV)}:{P(B_WUV)+1}]")
    a(f"s_mov_b64 s[66:67], s[{P(B_CKV)}:{P(B_CKV)+1}]")
    a("s_mov_b32 s22, 0")
    a("s_lshl_b32 s23, s31, 19")
    a(f"s_add_u32 s23, s23, {WS_VB}")
    a("s_mov_b32 s24, 8192")
    a("s_mov_b32 s25, 1024")
    a("s_mov_b32 s26, 4096")
    a("s_branch proj_go")
    a.label("proj_j1")
    a(f"s_mov_b64 s[64:65], s[{P(B_WUK)}:{P(B_WUK)+1}]")
    a(f"s_mov_b64 s[66:67], s[{P(B_CKV)}:{P(B_CKV)+1}]")
    a("s_mov_b32 s22, 1")
    a("s_lshl_b32 s23, s31, 19")
    a(f"s_add_u32 s23, s23, {WS_KB}")
    a("s_mov_b32 s24, 8192")
    a("s_mov_b32 s25, 2048")
    a("s_mov_b32 s26, 1024")
    a("s_branch proj_go")
    a.label("proj_j0")
    a(f"s_mov_b64 s[64:65], s[{P(B_WQ)}:{P(B_WQ)+1}]")
    a(f"s_mov_b64 s[66:67], s[{P(B_X)}:{P(B_X)+1}]")
    a("s_mov_b32 s22, 1")
    a("s_lshl_b32 s23, s31, 19")
    a(f"s_add_u32 s23, s23, {WS_QB}")
    a("s_mov_b32 s24, 8192")
    a("s_mov_b32 s25, 2048")
    a("s_mov_b32 s26, 1024")
    a.label("proj_go")
    srd(a, 4, 64, "s33")
    srd(a, 8, 66, 0x200000)
    srd(a, 12, 62, 0x10000000)
    a("v_and_b32 v11, 31, v0")
    a("v_lshrrev_b32 v12, 5, v0")
    a("v_and_b32 v13, 7, v0")
    a("s_lshl_b32 s30, s18, 13")
    for ks in range(4):
        a(f"v_or_b32 v14, {2*ks}, v12")
        a("v_xor_b32 v14, v14, v13")
        a("v_lshlrev_b32 v14, 4, v14")
        a(f"v_lshl_add_u32 v{2+ks}, v11, 7, v14")
        a(f"v_add_u32 v{2+ks}, s30, v{2+ks}")
    a("v_lshrrev_b32 v14, 4, v0")
    a("v_and_b32 v14, 1, v14")
    a("v_and_b32 v15, 15, v0")
    a("v_lshrrev_b32 v16, 2, v15")
    a("v_and_b32 v17, 3, v15")
    a("v_lshl_add_u32 v18, v12, 3, v16")
    a("v_lshlrev_b32 v18, 8, v18")
    a("v_and_b32 v19, 1, v17")
    a("v_lshl_add_u32 v18, v19, 3, v18")
    a("v_lshrrev_b32 v19, 1, v17")
    a("v_lshl_add_u32 v19, v14, 1, v19")
    a("v_lshlrev_b32 v20, 2, v16")
    for ii in range(2):
        a(f"s_lshl_b32 s30, s17, 3")
        a(f"s_add_u32 s30, s30, {ii*4}")
        a("v_add_u32 v21, s30, v19")
        a("v_xor_b32 v21, v21, v20")
        a(f"v_lshl_add_u32 v{6+ii}, v21, 4, v18")
        a(f"v_add_u32 v{6+ii}, 16384, v{6+ii}")
    a("v_lshrrev_b32 v14, 3, v0")
    a("v_and_b32 v15, 7, v0")
    a("v_xor_b32 v15, v15, v14")
    a("v_lshlrev_b32 v15, 4, v15")
    a("v_lshl_add_u32 v8, v14, 10, v15")
    a("v_lshrrev_b32 v14, 4, v0")
    a("v_and_b32 v15, 15, v0")
    a("v_lshlrev_b32 v16, 2, v14")
    a("v_xor_b32 v15, v15, v16")
    a("v_lshlrev_b32 v15, 4, v15")
    a("v_mul_lo_u32 v16, v14, s21")
    a("v_add_u32 v9, v15, v16")
    a("v_lshlrev_b32 v10, 4, v0")
    a("s_lshl_b32 s27, s32, 17")
    a("s_lshl_b32 s30, s16, 15")
    a("s_add_u32 s27, s27, s30")
    a("s_lshl_b32 s30, s16, 4")
    a("s_mul_i32 s28, s30, s21")
    a("s_lshl_b32 s30, s31, 8")
    a("s_add_u32 s28, s28, s30")
    a("s_lshl_b32 s34, s21, 2")
    a("s_lshl_b32 s35, s21, 6")
    a("s_lshl_b32 s68, s16, 12")
    for i in range(64):
        a(f"v_mov_b32 v{64+i}, 0")

    def dma(kc):
        b = kc & 1
        a(f"s_add_u32 s69, s68, {b*32768}")
        a("s_mov_b32 s70, s27")
        for i in range(4):
            a("s_mov_b32 m0, s69")
            a("s_add_u32 s69, s69, 1024")
            a("buffer_load_dwordx4 v8, s[8:11], s70 offen lds")
            a("s_add_u32 s70, s70, 8192")
        a(f"s_add_u32 s69, s68, {b*32768+16384}")
        a("s_mov_b32 s70, s28")
        for i in range(4):
            a("s_mov_b32 m0, s69")
            a("s_add_u32 s69, s69, 1024")
            a("buffer_load_dwordx4 v9, s[4:7], s70 offen lds")
            a("s_add_u32 s70, s70, s34")
        a("s_add_u32 s27, s27, 128")
        a("s_add_u32 s28, s28, s35")

    def frag_reads(b, ks, fs):
        base = 32 + fs * 16
        for ii in range(2):
            a(f"ds_read_b64_tr_b16 v[{base+ii*4}:{base+ii*4+1}], v{6+ii} offset:{b*32768+ks*4096}")
            a(f"ds_read_b64_tr_b16 v[{base+ii*4+2}:{base+ii*4+3}], v{6+ii} offset:{b*32768+ks*4096+1024}")
        for jj in range(2):
            a(f"ds_read_b128 v[{base+8+jj*4}:{base+8+jj*4+3}], v{2+ks} offset:{b*32768+jj*4096}")

    def mfmas(fs, transposed):
        base = 32 + fs * 16
        for ii in range(2):
            for jj in range(2):
                acc = 64 + (ii * 2 + jj) * 16
                W = f"v[{base+ii*4}:{base+ii*4+3}]"
                X = f"v[{base+8+jj*4}:{base+8+jj*4+3}]"
                A_, B_ = (W, X) if transposed else (X, W)
                a(f"v_mfma_f32_32x32x16_bf16 v[{acc}:{acc+15}], {A_}, {B_}, v[{acc}:{acc+15}]")

    dma(0)
    a("s_waitcnt vmcnt(0)")
    a("s_barrier")
    a("s_cmp_eq_u32 s22, 0")
    a("s_cbranch_scc1 proj_nt")
    for transposed in (1, 0):
        if not transposed:
            a.label("proj_nt")
        for kc in range(8):
            b = kc & 1
            if kc < 7:
                dma(kc + 1)
            frag_reads(b, 0, 0)
            for ks in range(4):
                if ks < 3:
                    frag_reads(b, ks + 1, (ks + 1) & 1)
                    a("s_waitcnt lgkmcnt(6)")
                else:
                    a("s_waitcnt lgkmcnt(0)")
                mfmas(ks & 1, transposed)
            if kc < 7:
                a("s_waitcnt vmcnt(0)")
                a("s_barrier")
        if transposed:
            a("s_branch proj_epi")
    a.label("proj_epi")
    a("s_nop 7")
    a("s_nop 7")
    a("s_lshl_b32 s30, s32, 2")
    a("s_lshl_b32 s69, s18, 1")
    a("s_add_u32 s30, s30, s69")
    a("s_mul_i32 s30, s30, s24")
    a("s_add_u32 s23, s23, s30")
    a("s_lshl_b32 s69, s17, 1")
    a("s_mul_i32 s69, s69, s25")
    a("s_add_u32 s23, s23, s69")
    for ii in range(2):
        for jj in range(2):
            acc = 64 + (ii * 2 + jj) * 16
            for c in range(2):
                a(f"s_mul_i32 s70, s24, {jj}")
                a("s_add_u32 s70, s70, s23")
                if ii:
                    a("s_add_u32 s70, s70, s25")
                if c:
                    a("s_add_u32 s70, s70, s26")
                lab = f"proj_sk_{ii}{jj}{c}"
                if ii == 1:
                    a("s_cmp_lg_u32 s29, 2")
                    a(f"s_cbranch_scc1 {lab}")
                else:
                    a("s_cmp_eq_u32 s29, 2")
                    a(f"s_cbranch_scc1 {lab}_go")
                    a("s_cmp_lg_u32 s17, 0")
                    a(f"s_cbranch_scc1 {lab}")
                    if c == 1:
                        a("s_cmp_eq_u32 s29, 1")
                        a(f"s_cbranch_scc1 {lab}")
                    a.label(lab + "_go")
                r = acc + c * 8
                for q in range(4):
                    a(f"v_cvt_pk_bf16_f32 v{32+q}, v{r+2*q}, v{r+2*q+1}")
                a("buffer_store_dwordx4 v[32:35], v10, s[12:15], s70 offen")
                a("s_nop 1")
                a.label(lab)
    a.label("proj_exit")
    a("s_endpgm")
    return name, 128


import math, struct
def f32hex(x):
    return "0x%08x" % struct.unpack("<I", struct.pack("<f", x))[0]

def gen_attnB(a):
    name = "attnb_kernel"
    kernel_header(a, name)
    C = (128 ** -0.5) * math.log2(math.e)
    Q0, S0, P0, O0, F0 = 16, 48, 80, 96, 160
    VM, VL, VT0, VT1, VT2, VQ, VADDR, VDMA = 2, 3, 4, 5, 6, 7, 8, 9
    a("s_cmp_ge_u32 s2, 256")
    a("s_cbranch_scc1 attnb_exit")
    a("s_load_dwordx2 s[4:5], s[0:1], 104")
    a("v_lshrrev_b32 v1, 6, v0")
    a("v_and_b32 v0, 63, v0")
    a("s_nop 0")
    a("v_readfirstlane_b32 s16, v1")
    a("s_waitcnt lgkmcnt(0)")
    srd(a, 8, 4, 0x10000000)
    a("s_lshr_b32 s17, s2, 3")
    a("s_and_b32 s18, s2, 7")
    a(f"v_lshlrev_b32 v{VADDR}, 4, v0")
    a(f"s_mov_b32 s40, {f32hex(C)}")
    a("s_mov_b32 s19, 0")
    a.label("attnb_pass")
    a("s_sub_u32 s20, 15, s18")
    a("s_cmp_eq_u32 s19, 0")
    a("s_cselect_b32 s20, s20, s18")
    a("s_lshl_b32 s21, s20, 1")
    a("s_add_u32 s21, s21, 2")
    a("s_lshl_b32 s22, s17, 6")
    a("s_lshl_b32 s23, s20, 2")
    a("s_add_u32 s22, s22, s23")
    a("s_add_u32 s22, s22, s16")
    a("s_lshl_b32 s22, s22, 13")
    a(f"s_add_u32 s22, s22, {WS_QB}")
    a("s_add_u32 s23, s22, 4096")
    for ks in range(8):
        a(f"buffer_load_dwordx4 v[{Q0+ks*4}:{Q0+ks*4+3}], v{VADDR}, s[8:11], s{22+ks//4} offen offset:{(ks&3)*1024}")
    a("s_lshl_b32 s24, s17, 19")
    a("s_lshl_b32 s25, s16, 12")
    a("s_add_u32 s24, s24, s25")
    a(f"s_add_u32 s25, s24, {WS_VB}")
    a(f"s_add_u32 s24, s24, {WS_KB}")
    a(f"v_and_b32 v{VQ}, 31, v0")
    a("v_lshrrev_b32 v10, 5, v0")
    a("v_lshlrev_b32 v10, 2, v10")
    a(f"v_sub_u32 v{VQ}, v{VQ}, v10")
    a("s_lshl_b32 s26, s20, 7")
    a("s_lshl_b32 s27, s16, 5")
    a("s_add_u32 s26, s26, s27")
    a(f"v_add_u32 v{VQ}, s26, v{VQ}")
    a(f"v_mov_b32 v{VM}, {f32hex(-1e30)}")
    a(f"v_mov_b32 v{VL}, 0")
    for i in range(64):
        a(f"v_mov_b32 v{O0+i}, 0")
    def dma(stage_sreg):
        a(f"s_mov_b32 m0, {stage_sreg}")
        a("s_nop 0")
        for i in range(4):
            a(f"buffer_load_dwordx4 v{VADDR}, s[8:11], s24 offen offset:{i*1024} lds")
        a(f"s_add_u32 s30, {stage_sreg}, 16384")
        a("s_mov_b32 m0, s30")
        a("s_nop 0")
        for i in range(4):
            a(f"buffer_load_dwordx4 v{VADDR}, s[8:11], s25 offen offset:{i*1024} lds")
        a("s_add_u32 s24, s24, 16384")
        a("s_add_u32 s25, s25, 16384")
    a("s_lshl_b32 s28, s16, 12")
    a("s_add_u32 s29, s28, 32768")
    a("s_barrier")
    dma("s28")
    a("s_mov_b32 s31, 0")
    a("s_waitcnt vmcnt(0)")
    a("s_barrier")
    a.label("attnb_loop")
    a("s_add_u32 s32, s31, 1")
    a("s_cmp_ge_u32 s32, s21")
    a("s_cbranch_scc1 attnb_nodma")
    dma("s29")
    a.label("attnb_nodma")
    a("s_and_b32 s33, s31, 1")
    a("s_lshl_b32 s33, s33, 15")
    a(f"v_add_u32 v{VT2}, s33, v{VADDR}")
    a("s_sub_u32 s34, s21, 1")
    a("s_cmp_eq_u32 s31, s34")
    a("s_cselect_b32 s35, 1, 0")
    a("s_cmp_lt_u32 s16, 2")
    a("s_cselect_b32 s36, 1, 0")
    a("s_and_b32 s35, s35, s36")
    a("s_cmp_eq_u32 s35, 1")
    a("s_cbranch_scc1 attnb_skip")
    for kb in range(2):
        for ks in range(8):
            f = F0 + (ks & 7) * 4
            a(f"ds_read_b128 v[{f}:{f+3}], v{VT2} offset:{(kb*8+ks)*1024}")
        for ks in range(8):
            f = F0 + (ks & 7) * 4
            a(f"s_waitcnt lgkmcnt({7-ks})")
            src2 = "0" if ks == 0 else f"v[{S0+kb*16}:{S0+kb*16+15}]"
            a(f"v_mfma_f32_32x32x16_bf16 v[{S0+kb*16}:{S0+kb*16+15}], v[{f}:{f+3}], v[{Q0+ks*4}:{Q0+ks*4+3}], {src2}")
    a("s_nop 15")
    a("s_sub_u32 s34, s21, 2")
    a("s_cmp_lt_u32 s31, s34")
    a("s_cbranch_scc1 attnb_nomask")
    a("s_lshl_b32 s34, s31, 6")
    a(f"v_subrev_u32 v{VT0}, s34, v{VQ}")
    a(f"v_mov_b32 v{VT1}, {f32hex(-1e30)}")
    for kb in range(2):
        for r in range(16):
            o = kb * 32 + 8 * (r >> 2) + (r & 3)
            a(f"v_cmp_gt_i32 vcc, {o}, v{VT0}")
            a("s_nop 1")
            a(f"v_cndmask_b32 v{S0+kb*16+r}, v{S0+kb*16+r}, v{VT1}, vcc")
    a.label("attnb_nomask")
    a(f"v_max3_f32 v{VT0}, v{S0}, v{S0+1}, v{S0+2}")
    for i in range(3, 31, 2):
        a(f"v_max3_f32 v{VT0}, v{VT0}, v{S0+i}, v{S0+i+1}")
    a(f"v_max_f32 v{VT0}, v{VT0}, v{S0+31}")
    a(f"v_mov_b32 v{VT1}, v{VT0}")
    a("s_nop 1")
    a(f"v_permlane32_swap_b32 v{VT0}, v{VT1}")
    a(f"v_max3_f32 v{VT0}, v{VT0}, v{VT1}, v{VM}")
    a(f"v_sub_f32 v{VT1}, v{VM}, v{VT0}")
    a(f"v_mul_f32 v{VT1}, s40, v{VT1}")
    a(f"v_exp_f32 v{VT1}, v{VT1}")
    a(f"v_mov_b32 v{VM}, v{VT0}")
    a(f"v_mul_f32 v{VT0}, s40, v{VT0}")
    a(f"v_mul_f32 v{VL}, v{VL}, v{VT1}")
    for i in range(64):
        a(f"v_mul_f32 v{O0+i}, v{O0+i}, v{VT1}")
    for i in range(32):
        a(f"v_fma_f32 v{S0+i}, v{S0+i}, s40, -v{VT0}")
    for i in range(32):
        a(f"v_exp_f32 v{S0+i}, v{S0+i}")
    a("s_nop 0")
    for i in range(32):
        a(f"v_add_f32 v{VL}, v{VL}, v{S0+i}")
    for i in range(16):
        a(f"v_cvt_pk_bf16_f32 v{P0+i}, v{S0+2*i}, v{S0+2*i+1}")
    for kg in range(4):
        for db in range(4):
            f = F0 + ((kg & 1) * 4 + db) * 4
            a(f"ds_read_b128 v[{f}:{f+3}], v{VT2} offset:{16384+(kg*4+db)*1024}")
        for db in range(4):
            f = F0 + ((kg & 1) * 4 + db) * 4
            a(f"s_waitcnt lgkmcnt({3-db})")
            a(f"v_mfma_f32_32x32x16_bf16 v[{O0+db*16}:{O0+db*16+15}], v[{f}:{f+3}], v[{P0+kg*4}:{P0+kg*4+3}], v[{O0+db*16}:{O0+db*16+15}]")
    a.label("attnb_skip")
    a("s_waitcnt vmcnt(0) lgkmcnt(0)")
    a("s_barrier")
    a("s_mov_b32 s30, s28")
    a("s_mov_b32 s28, s29")
    a("s_mov_b32 s29, s30")
    a("s_add_u32 s31, s31, 1")
    a("s_cmp_lt_u32 s31, s21")
    a("s_cbranch_scc1 attnb_loop")
    a("s_nop 15")
    a(f"v_mov_b32 v{VT1}, v{VL}")
    a("s_nop 1")
    a(f"v_permlane32_swap_b32 v{VL}, v{VT1}")
    a(f"v_add_f32 v{VL}, v{VL}, v{VT1}")
    a(f"v_rcp_f32 v{VL}, v{VL}")
    a("s_nop 0")
    a("s_lshl_b32 s22, s20, 2")
    a("s_add_u32 s22, s22, s16")
    a("s_lshl_b32 s22, s22, 8")
    a("s_lshl_b32 s23, s17, 3")
    a("s_add_u32 s22, s22, s23")
    a("s_lshl_b32 s22, s22, 10")
    a(f"s_add_u32 s22, s22, {WS_OB}")
    a("s_add_u32 s23, s22, 4096")
    for db in range(4):
        for c in range(2):
            r = O0 + db * 16 + c * 8
            for i in range(8):
                a(f"v_mul_f32 v{r+i}, v{r+i}, v{VL}")
            for q in range(4):
                a(f"v_cvt_pk_bf16_f32 v{F0+q+(c*4)}, v{r+2*q}, v{r+2*q+1}")
            a(f"buffer_store_dwordx4 v[{F0+c*4}:{F0+c*4+3}], v{VADDR}, s[8:11], s{22+db//2} offen offset:{((2*db+c)&3)*1024}")
    a("s_add_u32 s19, s19, 1")
    a("s_cmp_lt_u32 s19, 2")
    a("s_cbranch_scc1 attnb_pass")
    a.label("attnb_exit")
    a("s_endpgm")
    return name, 192


def gen_attnA(a):
    name = "attna_kernel"
    kernel_header(a, name)
    C = 0.25 * math.log2(math.e)
    Q0, S0, P0, O0, FK, FV = 12, 16, 48, 64, 80, 88
    VM, VT0, VT1, VT2, VADDR = 2, 3, 4, 5, 6
    a("s_cmp_ge_u32 s2, 256")
    a("s_cbranch_scc1 attna_exit")
    a("s_load_dwordx2 s[4:5], s[0:1], 104")
    a("v_lshrrev_b32 v1, 6, v0")
    a("v_and_b32 v0, 63, v0")
    a("s_nop 0")
    a("v_readfirstlane_b32 s16, v1")
    a("s_waitcnt lgkmcnt(0)")
    srd(a, 8, 4, 0x10000000)
    a("s_lshr_b32 s17, s2, 2")
    a("s_and_b32 s18, s2, 3")
    a("s_lshl_b32 s18, s18, 3")
    a("s_add_u32 s18, s18, s16")
    a(f"v_lshlrev_b32 v{VADDR}, 4, v0")
    a(f"s_mov_b32 s40, {f32hex(C)}")
    a("s_lshl_b32 s22, s17, 5")
    a("s_add_u32 s22, s22, s18")
    a("s_lshl_b32 s22, s22, 10")
    a(f"s_add_u32 s23, s22, {WS_QA}")
    a(f"buffer_load_dwordx4 v[{Q0}:{Q0+3}], v{VADDR}, s[8:11], s23 offen")
    a("v_and_b32 v7, 31, v0")
    a("v_cmp_eq_u32 vcc, 16, v7")
    a("v_mov_b32 v8, 0x3f803f80")
    a("s_nop 1")
    a("v_cndmask_b32 v8, 0, v8, vcc")
    for i in range(16):
        a(f"v_mov_b32 v{FV+i}, v8")
    a(f"v_mov_b32 v{VM}, {f32hex(-1e30)}")
    for i in range(16):
        a(f"v_mov_b32 v{O0+i}, 0")
    a("s_mov_b32 s42, 0x0000ffff")
    a("s_mov_b32 s43, 0x0000ffff")
    a("s_lshl_b32 s24, s16, 10")
    a(f"s_add_u32 s24, s24, {WS_KA}")
    a("s_lshl_b32 s25, s16, 11")
    a(f"s_add_u32 s25, s25, {WS_VA}")
    def dma(st):
        a("s_lshl_b32 s30, s16, 10")
        a(f"s_add_u32 s30, s30, {st}")
        a("s_mov_b32 m0, s30")
        a("s_lshl_b32 s30, s16, 11")
        a(f"buffer_load_dwordx4 v{VADDR}, s[8:11], s24 offen lds")
        a(f"s_add_u32 s30, s30, {st}")
        a("s_add_u32 s30, s30, 8192")
        a("s_mov_b32 m0, s30")
        a("s_add_u32 s24, s24, 8192")
        a(f"buffer_load_dwordx4 v{VADDR}, s[8:11], s25 offen lds")
        a(f"buffer_load_dwordx4 v{VADDR}, s[8:11], s25 offen offset:1024 lds")
        a("s_add_u32 s25, s25, 16384")
    a("s_mov_b32 s28, 0")
    a("s_mov_b32 s29, 24576")
    dma("s28")
    a("s_mov_b32 s31, 0")
    a("s_waitcnt vmcnt(0)")
    a("s_barrier")
    a.label("attna_loop")
    a("s_cmp_ge_u32 s31, 7")
    a("s_cbranch_scc1 attna_nodma")
    dma("s29")
    a.label("attna_nodma")
    a(f"v_add_u32 v{VT2}, s28, v{VADDR}")
    for sub in range(4):
        for kb in range(2):
            a(f"ds_read_b128 v[{FK+kb*4}:{FK+kb*4+3}], v{VT2} offset:{(sub*2+kb)*1024}")
        a("s_mov_b64 exec, s[42:43]")
        for kg in range(4):
            a(f"ds_read_b128 v[{FV+kg*4}:{FV+kg*4+3}], v{VT2} offset:{8192+(sub*4+kg)*1024}")
        a("s_mov_b64 exec, -1")
        for kb in range(2):
            a(f"s_waitcnt lgkmcnt({5-kb})")
            a(f"v_mfma_f32_32x32x16_bf16 v[{S0+kb*16}:{S0+kb*16+15}], v[{FK+kb*4}:{FK+kb*4+3}], v[{Q0}:{Q0+3}], 0")
        a("s_nop 15")
        a(f"v_max3_f32 v{VT0}, v{S0}, v{S0+1}, v{S0+2}")
        for i in range(3, 31, 2):
            a(f"v_max3_f32 v{VT0}, v{VT0}, v{S0+i}, v{S0+i+1}")
        a(f"v_max_f32 v{VT0}, v{VT0}, v{S0+31}")
        a(f"v_mov_b32 v{VT1}, v{VT0}")
        a("s_nop 1")
        a(f"v_permlane32_swap_b32 v{VT0}, v{VT1}")
        a(f"v_max3_f32 v{VT0}, v{VT0}, v{VT1}, v{VM}")
        a(f"v_sub_f32 v{VT1}, v{VM}, v{VT0}")
        a(f"v_mul_f32 v{VT1}, s40, v{VT1}")
        a(f"v_exp_f32 v{VT1}, v{VT1}")
        a(f"v_mov_b32 v{VM}, v{VT0}")
        a(f"v_mul_f32 v{VT0}, s40, v{VT0}")
        for i in range(16):
            a(f"v_mul_f32 v{O0+i}, v{O0+i}, v{VT1}")
        for i in range(32):
            a(f"v_fma_f32 v{S0+i}, v{S0+i}, s40, -v{VT0}")
        for i in range(32):
            a(f"v_exp_f32 v{S0+i}, v{S0+i}")
        a("s_nop 0")
        for i in range(16):
            a(f"v_cvt_pk_bf16_f32 v{P0+i}, v{S0+2*i}, v{S0+2*i+1}")
        a("s_waitcnt lgkmcnt(0)")
        for kg in range(4):
            a(f"v_mfma_f32_32x32x16_bf16 v[{O0}:{O0+15}], v[{FV+kg*4}:{FV+kg*4+3}], v[{P0+kg*4}:{P0+kg*4+3}], v[{O0}:{O0+15}]")
        a("s_nop 7")
        a("s_nop 7")
    a("s_waitcnt vmcnt(0) lgkmcnt(0)")
    a("s_barrier")
    a("s_mov_b32 s30, s28")
    a("s_mov_b32 s28, s29")
    a("s_mov_b32 s29, s30")
    a("s_add_u32 s31, s31, 1")
    a("s_cmp_lt_u32 s31, 8")
    a("s_cbranch_scc1 attna_loop")
    a(f"v_mov_b32 v{VT0}, v{O0+8}")
    a(f"v_mov_b32 v{VT1}, v{O0+8}")
    a("s_nop 1")
    a(f"v_permlane32_swap_b32 v{VT0}, v{VT1}")
    a(f"v_rcp_f32 v{VT0}, v{VT0}")
    a("s_nop 0")
    for i in range(8):
        a(f"v_mul_f32 v{O0+i}, v{O0+i}, v{VT0}")
    for q in range(4):
        a(f"v_cvt_pk_bf16_f32 v{P0+q}, v{O0+2*q}, v{O0+2*q+1}")
    a(f"s_add_u32 s23, s22, {WS_OA}")
    a(f"buffer_store_dwordx4 v[{P0}:{P0+3}], v{VADDR}, s[8:11], s23 offen")
    a.label("attna_exit")
    a("s_endpgm")
    return name, 104

def gen_oproj(a):
    name = "oproj_kernel"
    kernel_header(a, name)
    a("s_cmp_ge_u32 s2, 512")
    a("s_cbranch_scc1 oproj_exit")
    a("s_load_dwordx2 s[4:5], s[0:1], 32")
    a("s_load_dwordx2 s[6:7], s[0:1], 80")
    a("s_load_dwordx2 s[60:61], s[0:1], 88")
    a("s_load_dwordx2 s[62:63], s[0:1], 104")
    a("v_lshrrev_b32 v1, 6, v0")
    a("v_and_b32 v0, 63, v0")
    a("s_nop 0")
    a("v_readfirstlane_b32 s16, v1")
    a("s_waitcnt lgkmcnt(0)")
    a("s_and_b32 s17, s16, 1")
    a("s_lshr_b32 s18, s16, 1")
    a("s_and_b32 s19, s2, 255")
    a("s_and_b32 s20, s19, 7")
    a("s_lshr_b32 s21, s19, 3")
    a("s_cmp_lt_u32 s2, 256")
    a("s_cbranch_scc1 oproj_jb")
    a("s_mov_b32 s22, 8")
    a(f"s_mov_b32 s23, {WS_OA}")
    a("s_mov_b32 s24, 32768")
    a("s_mov_b32 s25, 0")
    a("s_mov_b32 s33, 0x80000")
    a("s_branch oproj_go")
    a.label("oproj_jb")
    a("s_mov_b64 s[4:5], s[6:7]")
    a("s_mov_b32 s22, 64")
    a(f"s_mov_b32 s23, {WS_OB}")
    a("s_mov_b32 s24, 262144")
    a("s_mov_b32 s25, 1024")
    a("s_mov_b32 s33, 0x400000")
    a.label("oproj_go")
    srd(a, 8, 4, "s33")
    srd(a, 12, 62, 0x10000000)
    srd(a, 64, 60, 0x400000)
    a("v_lshrrev_b32 v12, 5, v0")
    a("v_lshrrev_b32 v14, 4, v0")
    a("v_and_b32 v14, 1, v14")
    a("v_and_b32 v15, 15, v0")
    a("v_lshrrev_b32 v16, 2, v15")
    a("v_and_b32 v17, 3, v15")
    a("v_lshl_add_u32 v18, v12, 2, v16")
    a("v_lshlrev_b32 v18, 7, v18")
    a("v_and_b32 v19, 1, v17")
    a("v_lshl_add_u32 v18, v19, 3, v18")
    a("v_lshrrev_b32 v19, 1, v17")
    a("v_lshl_add_u32 v19, v14, 1, v19")
    a("s_lshl_b32 s30, s17, 2")
    a("v_add_u32 v19, s30, v19")
    a("v_lshlrev_b32 v20, 1, v16")
    a("v_xor_b32 v19, v19, v20")
    a("v_lshl_add_u32 v2, v19, 4, v18")
    a("v_lshrrev_b32 v14, 3, v0")
    a("v_and_b32 v15, 7, v0")
    a("v_and_b32 v16, 3, v14")
    a("v_lshlrev_b32 v16, 1, v16")
    a("v_xor_b32 v15, v15, v16")
    a("v_lshlrev_b32 v15, 4, v15")
    a("v_lshl_add_u32 v3, v14, 10, v15")
    a("v_lshlrev_b32 v4, 4, v0")
    a("s_lshl_b32 s26, s16, 14")
    a("s_lshl_b32 s30, s20, 7")
    a("s_add_u32 s26, s26, s30")
    a("s_lshl_b32 s30, s21, 1")
    a("s_add_u32 s30, s30, s18")
    a("s_mul_i32 s30, s30, s24")
    a("s_add_u32 s23, s23, s30")
    for i in range(16):
        a(f"v_mov_b32 v{48+i}, 0")
    def dma(b):
        a("s_lshl_b32 s30, s16, 11")
        a(f"s_add_u32 s30, s30, {b*8192}")
        a("s_mov_b32 m0, s30")
        a("s_add_u32 s31, s26, 8192")
        a("buffer_load_dwordx4 v3, s[8:11], s26 offen lds")
        a("s_add_u32 m0, m0, 1024")
        a("s_add_u32 s26, s26, 65536")
        a("buffer_load_dwordx4 v3, s[8:11], s31 offen lds")
    def xload(b):
        for ks in range(4):
            a(f"buffer_load_dwordx4 v[{16+b*16+ks*4}:{16+b*16+ks*4+3}], v4, s[12:15], s23 offen offset:{ks*1024}")
        a("s_add_u32 s23, s23, 4096")
    dma(0); xload(0)
    a("s_mov_b32 s27, 0")
    a("s_waitcnt vmcnt(0)")
    a("s_barrier")
    a.label("oproj_loop")
    for b in range(2):
        a("s_add_u32 s30, s27, 1")
        a("s_cmp_ge_u32 s30, s22")
        a(f"s_cbranch_scc1 oproj_nodma{b}")
        dma(1 - b); xload(1 - b)
        a.label(f"oproj_nodma{b}")
        for ks in range(4):
            a(f"ds_read_b64_tr_b16 v[{64+ks*4}:{64+ks*4+1}], v2 offset:{b*8192+ks*2048}")
            a(f"ds_read_b64_tr_b16 v[{64+ks*4+2}:{64+ks*4+3}], v2 offset:{b*8192+ks*2048+1024}")
        for ks in range(4):
            a(f"s_waitcnt lgkmcnt({6-2*ks})")
            a(f"v_mfma_f32_32x32x16_bf16 v[48:63], v[{64+ks*4}:{64+ks*4+3}], v[{16+b*16+ks*4}:{16+b*16+ks*4+3}], v[48:63]")
        a("s_waitcnt vmcnt(0)")
        a("s_barrier")
        a("s_add_u32 s27, s27, 1")
    a("s_cmp_lt_u32 s27, s22")
    a("s_cbranch_scc1 oproj_loop")
    a("s_nop 15")
    a("v_and_b32 v5, 31, v0")
    a("v_lshlrev_b32 v5, 11, v5")
    a("v_lshl_add_u32 v5, v12, 3, v5")
    a("s_lshl_b32 s30, s21, 1")
    a("s_add_u32 s30, s30, s18")
    a("s_lshl_b32 s30, s30, 16")
    a("s_add_u32 s30, s30, s25")
    a("s_lshl_b32 s31, s20, 7")
    a("s_add_u32 s30, s30, s31")
    a("s_lshl_b32 s31, s17, 6")
    a("s_add_u32 s30, s30, s31")
    for g in range(4):
        a(f"v_cvt_pk_bf16_f32 v{64+2*g}, v{48+4*g}, v{48+4*g+1}")
        a(f"v_cvt_pk_bf16_f32 v{64+2*g+1}, v{48+4*g+2}, v{48+4*g+3}")
    for g in range(4):
        a(f"buffer_store_dwordx2 v[{64+2*g}:{64+2*g+1}], v5, s[64:67], s30 offen offset:{g*16}")
    a.label("oproj_exit")
    a("s_endpgm")
    return name, 80

HEADER = """; generated
"""

def main():
    launches = []
    body = []
    a = Asm()
    nm, vg = gen_proj(a)
    body.append(a.text() + kernel_desc(nm, vg))
    launches.append(f"; @launch kernel=proj_kernel grid=(1632,1,1) block=(256,1,1) lds=65536")
    a = Asm()
    nm, vg = gen_attnB(a)
    body.append(a.text() + kernel_desc(nm, vg))
    launches.append(f"; @launch kernel=attnb_kernel grid=(256,1,1) block=(256,1,1) lds=65536")
    a = Asm()
    nm, vg = gen_attnA(a)
    body.append(a.text() + kernel_desc(nm, vg))
    launches.append(f"; @launch kernel=attna_kernel grid=(256,1,1) block=(512,1,1) lds=49152")
    a = Asm()
    nm, vg = gen_oproj(a)
    body.append(a.text() + kernel_desc(nm, vg))
    launches.append(f"; @launch kernel=oproj_kernel grid=(512,1,1) block=(256,1,1) lds=16384")
    out = "\n".join(launches) + "\n" + '.amdgcn_target "amdgcn-amd-amdhsa--gfx950"\n.text\n' + "\n".join(body)
    open(sys.argv[1] if len(sys.argv) > 1 else "out.s", "w").write(out)

main()
```

```python
import sys

class Asm:
    def __init__(self):
        self.lines = []
    def __call__(self, s):
        import re
        m = re.search(r"offset:(\d+)", s)
        if m:
            lim = 4096 if s.startswith("buffer") else 65536
            assert int(m.group(1)) < lim, s
        self.lines.append("    " + s)
    def label(self, s):
        self.lines.append(s + ":")
    def comment(self, s):
        self.lines.append("    ; " + s)
    def text(self):
        return "\n".join(self.lines) + "\n"

A_X, A_WQ, A_WK, A_WV, A_WO, B_X, B_CKV, B_WQ, B_WUK, B_WUV, B_WO, D_OUT, D_DBG, D_WS = [8 * i for i in range(14)]

MB = 1 << 20
WS_QB, WS_KB, WS_VB, WS_OB = 0, 16 * MB, 32 * MB, 48 * MB
WS_QA, WS_OA = 64 * MB, 66 * MB
WS_KA, WS_VA = 68 * MB, 69 * MB
WS_SIZE = 256 * MB

def kernel_header(a, name):
    a.lines.append(f".globl {name}\n.p2align 8\n.type {name},@function\n{name}:")

def kernel_desc(name, vgpr, sgpr=102, accum=None):
    if accum is None:
        accum = (vgpr + 3) // 4 * 4
    return f""".section .rodata,"a"
.p2align 6
.amdhsa_kernel {name}
  .amdhsa_next_free_vgpr {vgpr}
  .amdhsa_next_free_sgpr {sgpr}
  .amdhsa_accum_offset {accum}
  .amdhsa_group_segment_fixed_size 0
  .amdhsa_kernarg_size 112
  .amdhsa_user_sgpr_count 2
  .amdhsa_user_sgpr_kernarg_segment_ptr 1
  .amdhsa_system_sgpr_workgroup_id_x 1
.end_amdhsa_kernel
.text
"""

def srd(a, dst, ptr_lo, nbytes):
    a(f"s_mov_b32 s{dst}, s{ptr_lo}")
    a(f"s_and_b32 s{dst+1}, s{ptr_lo+1}, 0xffff")
    a(f"s_mov_b32 s{dst+2}, {nbytes}")
    a(f"s_mov_b32 s{dst+3}, 0x00020000")

def gen_proj(a):
    name = "proj_kernel"
    kernel_header(a, name)
    a("s_cmp_ge_u32 s2, 1632")
    a("s_cbranch_scc1 proj_exit")
    a("s_load_dwordx16 s[36:51], s[0:1], 0")
    a("s_load_dwordx8 s[52:59], s[0:1], 64")
    a("s_load_dwordx4 s[60:63], s[0:1], 96")
    a("v_lshrrev_b32 v1, 6, v0")
    a("v_and_b32 v0, 63, v0")
    a("s_nop 0")
    a("v_readfirstlane_b32 s16, v1")
    a("s_waitcnt lgkmcnt(0)")
    P = lambda off: 36 + off // 4
    a("s_and_b32 s17, s16, 1")
    a("s_lshr_b32 s18, s16, 1")
    a("s_and_b32 s30, s2, 511")
    a("s_and_b32 s31, s30, 31")
    a("s_lshr_b32 s32, s30, 5")
    a("s_mov_b32 s21, 8192")
    a("s_mov_b32 s33, 0x400000")
    a("s_mov_b32 s29, 2")
    a("s_cmp_lt_u32 s2, 512")
    a("s_cbranch_scc1 proj_j0")
    a("s_cmp_lt_u32 s2, 1024")
    a("s_cbranch_scc1 proj_j1")
    a("s_cmp_lt_u32 s2, 1536")
    a("s_cbranch_scc1 proj_j2")
    a("s_cmp_lt_u32 s2, 1600")
    a("s_cbranch_scc1 proj_j3")
    a("s_cmp_lt_u32 s2, 1616")
    a("s_cbranch_scc1 proj_j4")
    a("s_sub_u32 s32, s2, 1616")
    a("s_mov_b32 s31, 0")
    a(f"s_mov_b64 s[64:65], s[{P(A_WV)}:{P(A_WV)+1}]")
    a(f"s_mov_b64 s[66:67], s[{P(A_X)}:{P(A_X)+1}]")
    a("s_mov_b32 s21, 32")
    a("s_mov_b32 s33, 16384")
    a("s_mov_b32 s22, 0")
    a(f"s_mov_b32 s23, {WS_VA}")
    a("s_mov_b32 s24, 2048")
    a("s_mov_b32 s25, 0")
    a("s_mov_b32 s26, 1024")
    a("s_mov_b32 s29, 0")
    a("s_branch proj_go")
    a.label("proj_j4")
    a("s_sub_u32 s32, s2, 1600")
    a("s_mov_b32 s31, 0")
    a(f"s_mov_b64 s[64:65], s[{P(A_WK)}:{P(A_WK)+1}]")
    a(f"s_mov_b64 s[66:67], s[{P(A_X)}:{P(A_X)+1}]")
    a("s_mov_b32 s21, 32")
    a("s_mov_b32 s33, 16384")
    a("s_mov_b32 s22, 1")
    a(f"s_mov_b32 s23, {WS_KA}")
    a("s_mov_b32 s24, 1024")
    a("s_mov_b32 s25, 0")
    a("s_mov_b32 s26, 0")
    a("s_mov_b32 s29, 1")
    a("s_branch proj_go")
    a.label("proj_j3")
    a("s_sub_u32 s30, s2, 1536")
    a("s_and_b32 s31, s30, 3")
    a("s_lshr_b32 s32, s30, 2")
    a(f"s_mov_b64 s[64:65], s[{P(A_WQ)}:{P(A_WQ)+1}]")
    a(f"s_mov_b64 s[66:67], s[{P(A_X)}:{P(A_X)+1}]")
    a("s_mov_b32 s21, 1024")
    a("s_mov_b32 s33, 0x80000")
    a("s_mov_b32 s22, 1")
    a("s_lshl_b32 s23, s31, 13")
    a(f"s_add_u32 s23, s23, {WS_QA}")
    a("s_mov_b32 s24, 32768")
    a("s_mov_b32 s25, 2048")
    a("s_mov_b32 s26, 1024")
    a("s_branch proj_go")
    a.label("proj_j2")
    a(f"s_mov_b64 s[64:65], s[{P(B_WUV)}:{P(B_WUV)+1}]")
    a(f"s_mov_b64 s[66:67], s[{P(B_CKV)}:{P(B_CKV)+1}]")
    a("s_mov_b32 s22, 0")
    a("s_lshl_b32 s23, s31, 19")
    a(f"s_add_u32 s23, s23, {WS_VB}")
    a("s_mov_b32 s24, 8192")
    a("s_mov_b32 s25, 1024")
    a("s_mov_b32 s26, 4096")
    a("s_branch proj_go")
    a.label("proj_j1")
    a(f"s_mov_b64 s[64:65], s[{P(B_WUK)}:{P(B_WUK)+1}]")
    a(f"s_mov_b64 s[66:67], s[{P(B_CKV)}:{P(B_CKV)+1}]")
    a("s_mov_b32 s22, 1")
    a("s_lshl_b32 s23, s31, 19")
    a(f"s_add_u32 s23, s23, {WS_KB}")
    a("s_mov_b32 s24, 8192")
    a("s_mov_b32 s25, 2048")
    a("s_mov_b32 s26, 1024")
    a("s_branch proj_go")
    a.label("proj_j0")
    a(f"s_mov_b64 s[64:65], s[{P(B_WQ)}:{P(B_WQ)+1}]")
    a(f"s_mov_b64 s[66:67], s[{P(B_X)}:{P(B_X)+1}]")
    a("s_mov_b32 s22, 1")
    a("s_lshl_b32 s23, s31, 19")
    a(f"s_add_u32 s23, s23, {WS_QB}")
    a("s_mov_b32 s24, 8192")
    a("s_mov_b32 s25, 2048")
    a("s_mov_b32 s26, 1024")
    a.label("proj_go")
    srd(a, 4, 64, "s33")
    srd(a, 8, 66, 0x200000)
    srd(a, 12, 62, 0x10000000)
    a("v_and_b32 v11, 31, v0")
    a("v_lshrrev_b32 v12, 5, v0")
    a("v_and_b32 v13, 7, v0")
    a("s_lshl_b32 s30, s18, 13")
    for ks in range(4):
        a(f"v_or_b32 v14, {2*ks}, v12")
        a("v_xor_b32 v14, v14, v13")
        a("v_lshlrev_b32 v14, 4, v14")
        a(f"v_lshl_add_u32 v{2+ks}, v11, 7, v14")
        a(f"v_add_u32 v{2+ks}, s30, v{2+ks}")
    a("v_lshrrev_b32 v14, 4, v0")
    a("v_and_b32 v14, 1, v14")
    a("v_and_b32 v15, 15, v0")
    a("v_lshrrev_b32 v16, 2, v15")
    a("v_and_b32 v17, 3, v15")
    a("v_lshl_add_u32 v18, v12, 3, v16")
    a("v_lshlrev_b32 v18, 8, v18")
    a("v_and_b32 v19, 1, v17")
    a("v_lshl_add_u32 v18, v19, 3, v18")
    a("v_lshrrev_b32 v19, 1, v17")
    a("v_lshl_add_u32 v19, v14, 1, v19")
    a("v_lshlrev_b32 v20, 2, v16")
    for ii in range(2):
        a(f"s_lshl_b32 s30, s17, 3")
        a(f"s_add_u32 s30, s30, {ii*4}")
        a("v_add_u32 v21, s30, v19")
        a("v_xor_b32 v21, v21, v20")
        a(f"v_lshl_add_u32 v{6+ii}, v21, 4, v18")
        a(f"v_add_u32 v{6+ii}, 16384, v{6+ii}")
    a("v_lshrrev_b32 v14, 3, v0")
    a("v_and_b32 v15, 7, v0")
    a("v_xor_b32 v15, v15, v14")
    a("v_lshlrev_b32 v15, 4, v15")
    a("v_lshl_add_u32 v8, v14, 10, v15")
    a("v_lshrrev_b32 v14, 4, v0")
    a("v_and_b32 v15, 15, v0")
    a("v_lshlrev_b32 v16, 2, v14")
    a("v_xor_b32 v15, v15, v16")
    a("v_lshlrev_b32 v15, 4, v15")
    a("v_mul_lo_u32 v16, v14, s21")
    a("v_add_u32 v9, v15, v16")
    a("v_lshlrev_b32 v10, 4, v0")
    a("s_lshl_b32 s27, s32, 17")
    a("s_lshl_b32 s30, s16, 15")
    a("s_add_u32 s27, s27, s30")
    a("s_lshl_b32 s30, s16, 4")
    a("s_mul_i32 s28, s30, s21")
    a("s_lshl_b32 s30, s31, 8")
    a("s_add_u32 s28, s28, s30")
    a("s_lshl_b32 s34, s21, 2")
    a("s_lshl_b32 s35, s21, 6")
    a("s_lshl_b32 s68, s16, 12")
    for i in range(64):
        a(f"v_mov_b32 v{64+i}, 0")

    def dma(kc):
        b = kc & 1
        a(f"s_add_u32 s69, s68, {b*32768}")
        a("s_mov_b32 s70, s27")
        for i in range(4):
            a("s_mov_b32 m0, s69")
            a("s_add_u32 s69, s69, 1024")
            a("buffer_load_dwordx4 v8, s[8:11], s70 offen lds")
            a("s_add_u32 s70, s70, 8192")
        a(f"s_add_u32 s69, s68, {b*32768+16384}")
        a("s_mov_b32 s70, s28")
        for i in range(4):
            a("s_mov_b32 m0, s69")
            a("s_add_u32 s69, s69, 1024")
            a("buffer_load_dwordx4 v9, s[4:7], s70 offen lds")
            a("s_add_u32 s70, s70, s34")
        a("s_add_u32 s27, s27, 128")
        a("s_add_u32 s28, s28, s35")

    def frag_reads(b, ks, fs):
        base = 32 + fs * 16
        for ii in range(2):
            a(f"ds_read_b64_tr_b16 v[{base+ii*4}:{base+ii*4+1}], v{6+ii} offset:{b*32768+ks*4096}")
            a(f"ds_read_b64_tr_b16 v[{base+ii*4+2}:{base+ii*4+3}], v{6+ii} offset:{b*32768+ks*4096+1024}")
        for jj in range(2):
            a(f"ds_read_b128 v[{base+8+jj*4}:{base+8+jj*4+3}], v{2+ks} offset:{b*32768+jj*4096}")

    def mfmas(fs, transposed):
        base = 32 + fs * 16
        for ii in range(2):
            for jj in range(2):
                acc = 64 + (ii * 2 + jj) * 16
                W = f"v[{base+ii*4}:{base+ii*4+3}]"
                X = f"v[{base+8+jj*4}:{base+8+jj*4+3}]"
                A_, B_ = (W, X) if transposed else (X, W)
                a(f"v_mfma_f32_32x32x16_bf16 v[{acc}:{acc+15}], {A_}, {B_}, v[{acc}:{acc+15}]")

    dma(0)
    a("s_waitcnt vmcnt(0)")
    a("s_barrier")
    a("s_cmp_eq_u32 s22, 0")
    a("s_cbranch_scc1 proj_nt")
    for transposed in (1, 0):
        if not transposed:
            a.label("proj_nt")
        for kc in range(8):
            b = kc & 1
            if kc < 7:
                dma(kc + 1)
            frag_reads(b, 0, 0)
            for ks in range(4):
                if ks < 3:
                    frag_reads(b, ks + 1, (ks + 1) & 1)
                    a("s_waitcnt lgkmcnt(6)")
                else:
                    a("s_waitcnt lgkmcnt(0)")
                mfmas(ks & 1, transposed)
            if kc < 7:
                a("s_waitcnt vmcnt(0)")
                a("s_barrier")
        if transposed:
            a("s_branch proj_epi")
    a.label("proj_epi")
    a("s_nop 7")
    a("s_nop 7")
    a("s_lshl_b32 s30, s32, 2")
    a("s_lshl_b32 s69, s18, 1")
    a("s_add_u32 s30, s30, s69")
    a("s_mul_i32 s30, s30, s24")
    a("s_add_u32 s23, s23, s30")
    a("s_lshl_b32 s69, s17, 1")
    a("s_mul_i32 s69, s69, s25")
    a("s_add_u32 s23, s23, s69")
    for ii in range(2):
        for jj in range(2):
            acc = 64 + (ii * 2 + jj) * 16
            for c in range(2):
                a(f"s_mul_i32 s70, s24, {jj}")
                a("s_add_u32 s70, s70, s23")
                if ii:
                    a("s_add_u32 s70, s70, s25")
                if c:
                    a("s_add_u32 s70, s70, s26")
                lab = f"proj_sk_{ii}{jj}{c}"
                if ii == 1:
                    a("s_cmp_lg_u32 s29, 2")
                    a(f"s_cbranch_scc1 {lab}")
                else:
                    a("s_cmp_eq_u32 s29, 2")
                    a(f"s_cbranch_scc1 {lab}_go")
                    a("s_cmp_lg_u32 s17, 0")
                    a(f"s_cbranch_scc1 {lab}")
                    if c == 1:
                        a("s_cmp_eq_u32 s29, 1")
                        a(f"s_cbranch_scc1 {lab}")
                    a.label(lab + "_go")
                r = acc + c * 8
                for q in range(4):
                    a(f"v_cvt_pk_bf16_f32 v{32+q}, v{r+2*q}, v{r+2*q+1}")
                a("buffer_store_dwordx4 v[32:35], v10, s[12:15], s70 offen")
                a("s_nop 1")
                a.label(lab)
    a.label("proj_exit")
    a("s_endpgm")
    return name, 128


import math, struct
def f32hex(x):
    return "0x%08x" % struct.unpack("<I", struct.pack("<f", x))[0]

def gen_attnB(a):
    name = "attnb_kernel"
    kernel_header(a, name)
    C = (128 ** -0.5) * math.log2(math.e)
    Q0, S0, P0, O0, F0 = 16, 48, 80, 96, 160
    VM, VL, VT0, VT1, VT2, VQ, VADDR, VDMA = 2, 3, 4, 5, 6, 7, 8, 9
    a("s_cmp_ge_u32 s2, 256")
    a("s_cbranch_scc1 attna_entry")
    a("s_load_dwordx2 s[4:5], s[0:1], 104")
    a("v_lshrrev_b32 v1, 6, v0")
    a("v_and_b32 v0, 63, v0")
    a("s_nop 0")
    a("v_readfirstlane_b32 s16, v1")
    a("s_waitcnt lgkmcnt(0)")
    srd(a, 8, 4, 0x10000000)
    a("s_and_b32 s17, s2, 7")
    a("s_lshl_b32 s17, s17, 2")
    a("s_lshr_b32 s18, s2, 3")
    a("s_and_b32 s18, s18, 3")
    a("s_add_u32 s17, s17, s18")
    a("s_lshr_b32 s18, s2, 5")
    a(f"v_lshlrev_b32 v{VADDR}, 4, v0")
    a(f"s_mov_b32 s40, {f32hex(C)}")
    a("s_mov_b32 s19, 0")
    a.label("attnb_pass")
    a("s_sub_u32 s20, 15, s18")
    a("s_cmp_eq_u32 s19, 0")
    a("s_cselect_b32 s20, s20, s18")
    a("s_lshl_b32 s21, s20, 1")
    a("s_add_u32 s21, s21, 2")
    a("s_lshl_b32 s22, s17, 6")
    a("s_lshl_b32 s23, s20, 2")
    a("s_add_u32 s22, s22, s23")
    a("s_add_u32 s22, s22, s16")
    a("s_lshl_b32 s22, s22, 13")
    a(f"s_add_u32 s22, s22, {WS_QB}")
    a("s_add_u32 s23, s22, 4096")
    for ks in range(8):
        a(f"buffer_load_dwordx4 v[{Q0+ks*4}:{Q0+ks*4+3}], v{VADDR}, s[8:11], s{22+ks//4} offen offset:{(ks&3)*1024}")
    a("s_lshl_b32 s24, s17, 19")
    a("s_lshl_b32 s25, s16, 12")
    a("s_add_u32 s24, s24, s25")
    a(f"s_add_u32 s25, s24, {WS_VB}")
    a(f"s_add_u32 s24, s24, {WS_KB}")
    a(f"v_and_b32 v{VQ}, 31, v0")
    a("v_lshrrev_b32 v10, 5, v0")
    a("v_lshlrev_b32 v10, 2, v10")
    a(f"v_sub_u32 v{VQ}, v{VQ}, v10")
    a("s_lshl_b32 s26, s20, 7")
    a("s_lshl_b32 s27, s16, 5")
    a("s_add_u32 s26, s26, s27")
    a(f"v_add_u32 v{VQ}, s26, v{VQ}")
    a(f"v_mov_b32 v{VM}, {f32hex(-1e30)}")
    a(f"v_mov_b32 v{VL}, 0")
    for i in range(64):
        a(f"v_mov_b32 v{O0+i}, 0")
    S1 = 192
    SB = [S0, S1]
    def dmaK(par):
        a(f"s_add_u32 s30, s28, {par}")
        a("s_mov_b32 m0, s30")
        a("s_nop 0")
        for i in range(4):
            a(f"buffer_load_dwordx4 v{VADDR}, s[8:11], s24 offen offset:{i*1024} lds")
        a("s_add_u32 s24, s24, 16384")
    def dmaV(par):
        a(f"s_add_u32 s30, s28, {par}")
        a("s_add_u32 s30, s30, 32768")
        a("s_mov_b32 m0, s30")
        a("s_nop 0")
        for i in range(4):
            a(f"buffer_load_dwordx4 v{VADDR}, s[8:11], s25 offen offset:{i*1024} lds")
        a("s_add_u32 s25, s25, 16384")
    def qk_ops(S, vaddr):
        ops = []
        for j in range(16):
            kb, ks = j // 8, j % 8
            f = F0 + (j & 7) * 4
            rd = f"ds_read_b128 v[{f}:{f+3}], v{vaddr} offset:{(kb*8+ks)*1024}"
            src2 = "0" if ks == 0 else f"v[{S+kb*16}:{S+kb*16+15}]"
            mf = f"v_mfma_f32_32x32x16_bf16 v[{S+kb*16}:{S+kb*16+15}], v[{f}:{f+3}], v[{Q0+ks*4}:{Q0+ks*4+3}], {src2}"
            ops.append((rd, mf))
        return ops
    def mask(S, tile_sreg, lab):
        a("s_sub_u32 s34, s21, 2")
        a(f"s_cmp_lt_u32 {tile_sreg}, s34")
        a(f"s_cbranch_scc1 {lab}")
        a("s_nop 15")
        a(f"s_lshl_b32 s34, {tile_sreg}, 6")
        a(f"v_subrev_u32 v{VT0}, s34, v{VQ}")
        a(f"v_mov_b32 v{VT1}, {f32hex(-1e30)}")
        for kb in range(2):
            for r in range(16):
                o = kb * 32 + 8 * (r >> 2) + (r & 3)
                a(f"v_cmp_gt_i32 vcc, {o}, v{VT0}")
                a("s_nop 1")
                a(f"v_cndmask_b32 v{S+kb*16+r}, v{S+kb*16+r}, v{VT1}, vcc")
        a.label(lab)
    a("s_lshl_b32 s28, s16, 12")
    a("s_mov_b32 s44, 0")
    a("s_mov_b32 s45, 16384")
    a("s_barrier")
    dmaK("s44"); dmaV("s44"); dmaK("s45")
    a("s_waitcnt vmcnt(0)")
    a("s_barrier")
    for rd, mf in qk_ops(S0, VADDR):
        a(rd); a("s_waitcnt lgkmcnt(0)"); a(mf)
    a("s_mov_b32 s31, 0")
    mask(S0, "s31", "attnb_m0")
    a.label("attnb_loop")
    for par in range(2):
        Sc, Sn = SB[par], SB[1 - par]
        a("s_add_u32 s32, s31, 1")
        a("s_add_u32 s33, s31, 2")
        a("s_cmp_ge_u32 s33, s21")
        a(f"s_cbranch_scc1 attnb_nk{par}")
        dmaK("s44" if par == 0 else "s45")
        a.label(f"attnb_nk{par}")
        a("s_cmp_ge_u32 s32, s21")
        a(f"s_cbranch_scc1 attnb_nv{par}")
        dmaV("s45" if par == 0 else "s44")
        a.label(f"attnb_nv{par}")
        a(f"v_add_u32 v{VT2}, {16384*(1-par)}, v{VADDR}")
        a(f"v_add_u32 v{VDMA}, {32768+16384*par}, v{VADDR}")
        a("s_nop 7")
        a(f"v_max3_f32 v{VT0}, v{Sc}, v{Sc+1}, v{Sc+2}")
        for i in range(3, 31, 2):
            a(f"v_max3_f32 v{VT0}, v{VT0}, v{Sc+i}, v{Sc+i+1}")
        a(f"v_max_f32 v{VT0}, v{VT0}, v{Sc+31}")
        a(f"v_mov_b32 v{VT1}, v{VT0}")
        a("s_nop 1")
        a(f"v_permlane32_swap_b32 v{VT0}, v{VT1}")
        a(f"v_max3_f32 v{VT0}, v{VT0}, v{VT1}, v{VM}")
        a(f"v_cmp_gt_f32 vcc, v{VT0}, v{VM}")
        a("s_nop 4")
        a(f"s_cbranch_vccz attnb_nors{par}")
        a(f"v_sub_f32 v{VT1}, v{VM}, v{VT0}")
        a(f"v_mul_f32 v{VT1}, s40, v{VT1}")
        a(f"v_exp_f32 v{VT1}, v{VT1}")
        a(f"v_mov_b32 v{VM}, v{VT0}")
        a(f"v_mul_f32 v{VL}, v{VL}, v{VT1}")
        for i in range(64):
            a(f"v_mul_f32 v{O0+i}, v{O0+i}, v{VT1}")
        a.label(f"attnb_nors{par}")
        a(f"v_mul_f32 v{VT0}, s40, v{VM}")
        V = []
        for blk in range(4):
            for i in range(8):
                V.append(f"v_fma_f32 v{Sc+blk*8+i}, v{Sc+blk*8+i}, s40, -v{VT0}")
            if blk > 0:
                for i in range(8):
                    V.append(f"v_add_f32 v{VL}, v{VL}, v{Sc+(blk-1)*8+i}")
                for i in range(4):
                    V.append(f"v_cvt_pk_bf16_f32 v{P0+(blk-1)*4+i}, v{Sc+(blk-1)*8+2*i}, v{Sc+(blk-1)*8+2*i+1}")
            for i in range(8):
                V.append(f"v_exp_f32 v{Sc+blk*8+i}, v{Sc+blk*8+i}")
        V.append("s_nop 0")
        for i in range(8):
            V.append(f"v_add_f32 v{VL}, v{VL}, v{Sc+24+i}")
        for i in range(4):
            V.append(f"v_cvt_pk_bf16_f32 v{P0+12+i}, v{Sc+24+2*i}, v{Sc+24+2*i+1}")
        a("s_cmp_ge_u32 s32, s21")
        a(f"s_cbranch_scc1 attnb_last{par}")
        ops = qk_ops(Sn, VT2)
        for j in range(4):
            a(ops[j][0])
        per = (len(V) + 15) // 16
        vi = 0
        for j in range(16):
            if j + 4 < 16:
                a(ops[j + 4][0]); a("s_waitcnt lgkmcnt(4)")
            else:
                a(f"s_waitcnt lgkmcnt({15-j})")
            a(ops[j][1])
            for x in V[vi:vi + per]:
                a(x)
            vi += per
        assert vi >= len(V)
        a(f"s_branch attnb_pv{par}")
        a.label(f"attnb_last{par}")
        for x in V:
            a(x)
        a.label(f"attnb_pv{par}")
        def vrd(j):
            f = F0 + (j & 7) * 4
            a(f"ds_read_b128 v[{f}:{f+3}], v{VDMA} offset:{j*1024}")
        for j in range(6):
            vrd(j)
        for j in range(16):
            kg, db = j // 4, j % 4
            if j + 6 < 16:
                vrd(j + 6); a("s_waitcnt lgkmcnt(6)")
            else:
                a(f"s_waitcnt lgkmcnt({15-j})")
            f = F0 + (j & 7) * 4
            a(f"v_mfma_f32_32x32x16_bf16 v[{O0+db*16}:{O0+db*16+15}], v[{f}:{f+3}], v[{P0+kg*4}:{P0+kg*4+3}], v[{O0+db*16}:{O0+db*16+15}]")
        mask(Sn, "s32", f"attnb_m1{par}")
        a("s_waitcnt vmcnt(0) lgkmcnt(0)")
        a("s_barrier")
        a("s_add_u32 s31, s31, 1")
        a("s_cmp_ge_u32 s31, s21")
        a("s_cbranch_scc1 attnb_done")
    a("s_branch attnb_loop")
    a.label("attnb_done")
    a("s_nop 15")
    a(f"v_mov_b32 v{VT1}, v{VL}")
    a("s_nop 1")
    a(f"v_permlane32_swap_b32 v{VL}, v{VT1}")
    a(f"v_add_f32 v{VL}, v{VL}, v{VT1}")
    a(f"v_rcp_f32 v{VL}, v{VL}")
    a("s_nop 0")
    a("s_lshl_b32 s22, s20, 2")
    a("s_add_u32 s22, s22, s16")
    a("s_lshl_b32 s22, s22, 8")
    a("s_lshl_b32 s23, s17, 3")
    a("s_add_u32 s22, s22, s23")
    a("s_lshl_b32 s22, s22, 10")
    a(f"s_add_u32 s22, s22, {WS_OB}")
    a("s_add_u32 s23, s22, 4096")
    for db in range(4):
        for c in range(2):
            r = O0 + db * 16 + c * 8
            for i in range(8):
                a(f"v_mul_f32 v{r+i}, v{r+i}, v{VL}")
            for q in range(4):
                a(f"v_cvt_pk_bf16_f32 v{F0+q+(c*4)}, v{r+2*q}, v{r+2*q+1}")
            a(f"buffer_store_dwordx4 v[{F0+c*4}:{F0+c*4+3}], v{VADDR}, s[8:11], s{22+db//2} offen offset:{((2*db+c)&3)*1024}")
    a("s_add_u32 s19, s19, 1")
    a("s_cmp_lt_u32 s19, 2")
    a("s_cbranch_scc1 attnb_pass")
    a.label("attnb_exit")
    a("s_endpgm")
    return name, 224


def gen_attnA(a):
    name = "attna_kernel"
    a.label("attna_entry")
    a("s_sub_u32 s2, s2, 256")
    C = 0.25 * math.log2(math.e)
    Q0, S0, P0, O0, FK, FV = 12, 16, 48, 64, 80, 88
    VM, VT0, VT1, VT2, VADDR = 2, 3, 4, 5, 6
    a("s_cmp_ge_u32 s2, 512")
    a("s_cbranch_scc1 attna_exit")
    a("s_load_dwordx2 s[4:5], s[0:1], 104")
    a("v_lshrrev_b32 v1, 6, v0")
    a("v_and_b32 v0, 63, v0")
    a("s_nop 0")
    a("v_readfirstlane_b32 s16, v1")
    a("s_waitcnt lgkmcnt(0)")
    srd(a, 8, 4, 0x10000000)
    a("s_lshr_b32 s17, s2, 3")
    a("s_and_b32 s18, s2, 7")
    a("s_lshl_b32 s18, s18, 2")
    a("s_add_u32 s18, s18, s16")
    a(f"v_lshlrev_b32 v{VADDR}, 4, v0")
    a(f"s_mov_b32 s40, {f32hex(C)}")
    a("s_lshl_b32 s22, s17, 5")
    a("s_add_u32 s22, s22, s18")
    a("s_lshl_b32 s22, s22, 10")
    a(f"s_add_u32 s23, s22, {WS_QA}")
    a(f"buffer_load_dwordx4 v[{Q0}:{Q0+3}], v{VADDR}, s[8:11], s23 offen")
    a("v_and_b32 v7, 31, v0")
    a("v_cmp_eq_u32 vcc, 16, v7")
    a("v_mov_b32 v8, 0x3f803f80")
    a("s_nop 1")
    a("v_cndmask_b32 v8, 0, v8, vcc")
    for i in range(16):
        a(f"v_mov_b32 v{FV+i}, v8")
    a(f"v_mov_b32 v{VM}, {f32hex(-1e30)}")
    for i in range(16):
        a(f"v_mov_b32 v{O0+i}, 0")
    a("s_mov_b32 s42, 0x0000ffff")
    a("s_mov_b32 s43, 0x0000ffff")
    a("s_lshl_b32 s24, s16, 11")
    a(f"s_add_u32 s24, s24, {WS_KA}")
    a("s_lshl_b32 s25, s16, 12")
    a(f"s_add_u32 s25, s25, {WS_VA}")
    def dma(st):
        a("s_lshl_b32 s30, s16, 11")
        a(f"s_add_u32 s30, s30, {st}")
        a("s_mov_b32 m0, s30")
        a("s_lshl_b32 s30, s16, 12")
        a(f"buffer_load_dwordx4 v{VADDR}, s[8:11], s24 offen lds")
        a(f"buffer_load_dwordx4 v{VADDR}, s[8:11], s24 offen offset:1024 lds")
        a(f"s_add_u32 s30, s30, {st}")
        a("s_add_u32 s30, s30, 8192")
        a("s_mov_b32 m0, s30")
        a("s_add_u32 s24, s24, 8192")
        for i in range(4):
            a(f"buffer_load_dwordx4 v{VADDR}, s[8:11], s25 offen offset:{i*1024} lds")
        a("s_add_u32 s25, s25, 16384")
    a("s_mov_b32 s28, 0")
    a("s_mov_b32 s29, 24576")
    dma("s28")
    a("s_mov_b32 s31, 0")
    a("s_waitcnt vmcnt(0)")
    a("s_barrier")
    a.label("attna_loop")
    a("s_cmp_ge_u32 s31, 7")
    a("s_cbranch_scc1 attna_nodma")
    dma("s29")
    a.label("attna_nodma")
    a(f"v_add_u32 v{VT2}, s28, v{VADDR}")
    for sub in range(4):
        for kb in range(2):
            a(f"ds_read_b128 v[{FK+kb*4}:{FK+kb*4+3}], v{VT2} offset:{(sub*2+kb)*1024}")
        a("s_mov_b64 exec, s[42:43]")
        for kg in range(4):
            a(f"ds_read_b128 v[{FV+kg*4}:{FV+kg*4+3}], v{VT2} offset:{8192+(sub*4+kg)*1024}")
        a("s_mov_b64 exec, -1")
        for kb in range(2):
            a(f"s_waitcnt lgkmcnt({5-kb})")
            a(f"v_mfma_f32_32x32x16_bf16 v[{S0+kb*16}:{S0+kb*16+15}], v[{FK+kb*4}:{FK+kb*4+3}], v[{Q0}:{Q0+3}], 0")
        a("s_nop 15")
        a(f"v_max3_f32 v{VT0}, v{S0}, v{S0+1}, v{S0+2}")
        for i in range(3, 31, 2):
            a(f"v_max3_f32 v{VT0}, v{VT0}, v{S0+i}, v{S0+i+1}")
        a(f"v_max_f32 v{VT0}, v{VT0}, v{S0+31}")
        a(f"v_mov_b32 v{VT1}, v{VT0}")
        a("s_nop 1")
        a(f"v_permlane32_swap_b32 v{VT0}, v{VT1}")
        a(f"v_max3_f32 v{VT0}, v{VT0}, v{VT1}, v{VM}")
        a(f"v_sub_f32 v{VT1}, v{VM}, v{VT0}")
        a(f"v_mul_f32 v{VT1}, s40, v{VT1}")
        a(f"v_exp_f32 v{VT1}, v{VT1}")
        a(f"v_mov_b32 v{VM}, v{VT0}")
        a(f"v_mul_f32 v{VT0}, s40, v{VT0}")
        for i in range(16):
            a(f"v_mul_f32 v{O0+i}, v{O0+i}, v{VT1}")
        for i in range(32):
            a(f"v_fma_f32 v{S0+i}, v{S0+i}, s40, -v{VT0}")
        for i in range(32):
            a(f"v_exp_f32 v{S0+i}, v{S0+i}")
        a("s_nop 0")
        for i in range(16):
            a(f"v_cvt_pk_bf16_f32 v{P0+i}, v{S0+2*i}, v{S0+2*i+1}")
        a("s_waitcnt lgkmcnt(0)")
        for kg in range(4):
            a(f"v_mfma_f32_32x32x16_bf16 v[{O0}:{O0+15}], v[{FV+kg*4}:{FV+kg*4+3}], v[{P0+kg*4}:{P0+kg*4+3}], v[{O0}:{O0+15}]")
        a("s_nop 7")
        a("s_nop 7")
    a("s_waitcnt vmcnt(0) lgkmcnt(0)")
    a("s_barrier")
    a("s_mov_b32 s30, s28")
    a("s_mov_b32 s28, s29")
    a("s_mov_b32 s29, s30")
    a("s_add_u32 s31, s31, 1")
    a("s_cmp_lt_u32 s31, 8")
    a("s_cbranch_scc1 attna_loop")
    a(f"v_mov_b32 v{VT0}, v{O0+8}")
    a(f"v_mov_b32 v{VT1}, v{O0+8}")
    a("s_nop 1")
    a(f"v_permlane32_swap_b32 v{VT0}, v{VT1}")
    a(f"v_rcp_f32 v{VT0}, v{VT0}")
    a("s_nop 0")
    for i in range(8):
        a(f"v_mul_f32 v{O0+i}, v{O0+i}, v{VT0}")
    for q in range(4):
        a(f"v_cvt_pk_bf16_f32 v{P0+q}, v{O0+2*q}, v{O0+2*q+1}")
    a(f"s_add_u32 s23, s22, {WS_OA}")
    a(f"buffer_store_dwordx4 v[{P0}:{P0+3}], v{VADDR}, s[8:11], s23 offen")
    a.label("attna_exit")
    a("s_endpgm")
    return name, 104

def gen_oproj(a):
    name = "oproj_kernel"
    kernel_header(a, name)
    a("s_cmp_ge_u32 s2, 512")
    a("s_cbranch_scc1 oproj_exit")
    a("s_load_dwordx2 s[4:5], s[0:1], 32")
    a("s_load_dwordx2 s[6:7], s[0:1], 80")
    a("s_load_dwordx2 s[60:61], s[0:1], 88")
    a("s_load_dwordx2 s[62:63], s[0:1], 104")
    a("v_lshrrev_b32 v1, 6, v0")
    a("v_and_b32 v0, 63, v0")
    a("s_nop 0")
    a("v_readfirstlane_b32 s16, v1")
    a("s_waitcnt lgkmcnt(0)")
    a("s_and_b32 s17, s16, 1")
    a("s_lshr_b32 s18, s16, 1")
    a("s_and_b32 s19, s2, 255")
    a("s_and_b32 s20, s19, 7")
    a("s_lshr_b32 s21, s19, 3")
    a("s_cmp_lt_u32 s2, 256")
    a("s_cbranch_scc1 oproj_jb")
    a("s_mov_b32 s22, 2")
    a(f"s_mov_b32 s23, {WS_OA}")
    a("s_mov_b32 s24, 32768")
    a("s_mov_b32 s25, 0")
    a("s_mov_b32 s33, 0x80000")
    a("s_branch oproj_go")
    a.label("oproj_jb")
    a("s_mov_b64 s[4:5], s[6:7]")
    a("s_mov_b32 s22, 16")
    a(f"s_mov_b32 s23, {WS_OB}")
    a("s_mov_b32 s24, 262144")
    a("s_mov_b32 s25, 1024")
    a("s_mov_b32 s33, 0x400000")
    a.label("oproj_go")
    srd(a, 8, 4, "s33")
    srd(a, 12, 62, 0x10000000)
    srd(a, 64, 60, 0x400000)
    a("v_lshrrev_b32 v12, 5, v0")
    a("v_lshrrev_b32 v14, 4, v0")
    a("v_and_b32 v14, 1, v14")
    a("v_and_b32 v15, 15, v0")
    a("v_lshrrev_b32 v16, 2, v15")
    a("v_and_b32 v17, 3, v15")
    a("v_lshl_add_u32 v18, v12, 2, v16")
    a("v_lshlrev_b32 v18, 7, v18")
    a("v_and_b32 v19, 1, v17")
    a("v_lshl_add_u32 v18, v19, 3, v18")
    a("v_lshrrev_b32 v19, 1, v17")
    a("v_lshl_add_u32 v19, v14, 1, v19")
    a("s_lshl_b32 s30, s17, 2")
    a("v_add_u32 v19, s30, v19")
    a("v_lshlrev_b32 v20, 1, v16")
    a("v_xor_b32 v19, v19, v20")
    a("v_lshl_add_u32 v2, v19, 4, v18")
    a("v_lshrrev_b32 v14, 3, v0")
    a("v_and_b32 v15, 7, v0")
    a("v_and_b32 v16, 3, v14")
    a("v_lshlrev_b32 v16, 1, v16")
    a("v_xor_b32 v15, v15, v16")
    a("v_lshlrev_b32 v15, 4, v15")
    a("v_lshl_add_u32 v3, v14, 10, v15")
    a("v_lshlrev_b32 v4, 4, v0")
    a("s_lshl_b32 s26, s16, 16")
    a("s_lshl_b32 s30, s20, 7")
    a("s_add_u32 s26, s26, s30")
    a("s_lshl_b32 s30, s21, 1")
    a("s_add_u32 s30, s30, s18")
    a("s_mul_i32 s30, s30, s24")
    a("s_add_u32 s23, s23, s30")
    for i in range(16):
        a(f"v_mov_b32 v{48+i}, 0")
    XF = [80, 144]
    def dma(b):
        a("s_lshl_b32 s30, s16, 13")
        a(f"s_add_u32 s30, s30, {b*32768}")
        a("s_mov_b32 m0, s30")
        a("s_mov_b32 s31, s26")
        for i in range(8):
            a("buffer_load_dwordx4 v3, s[8:11], s31 offen lds")
            if i < 7:
                a("s_add_u32 m0, m0, 1024")
                a("s_add_u32 s31, s31, 8192")
        a("s_add_u32 s26, s26, 262144")
    def xload(b):
        for ks in range(16):
            a(f"buffer_load_dwordx4 v[{XF[b]+ks*4}:{XF[b]+ks*4+3}], v4, s[12:15], s23 offen offset:{(ks&3)*1024}")
            if ks & 3 == 3:
                a("s_add_u32 s23, s23, 4096")
    dma(0); xload(0)
    a("s_mov_b32 s27, 0")
    a("s_waitcnt vmcnt(0)")
    a("s_barrier")
    a.label("oproj_loop")
    for b in range(2):
        a("s_add_u32 s30, s27, 1")
        a("s_cmp_ge_u32 s30, s22")
        a(f"s_cbranch_scc1 oproj_nodma{b}")
        dma(1 - b); xload(1 - b)
        a.label(f"oproj_nodma{b}")
        def rd(ks):
            f = 64 + (ks & 3) * 4
            a(f"ds_read_b64_tr_b16 v[{f}:{f+1}], v2 offset:{b*32768+ks*2048}")
            a(f"ds_read_b64_tr_b16 v[{f+2}:{f+3}], v2 offset:{b*32768+ks*2048+1024}")
        for ks in range(3):
            rd(ks)
        for ks in range(16):
            if ks + 3 < 16:
                rd(ks + 3)
                a("s_waitcnt lgkmcnt(6)")
            else:
                a(f"s_waitcnt lgkmcnt({2*(15-ks)})")
            f = 64 + (ks & 3) * 4
            a(f"v_mfma_f32_32x32x16_bf16 v[48:63], v[{f}:{f+3}], v[{XF[b]+ks*4}:{XF[b]+ks*4+3}], v[48:63]")
        a("s_waitcnt vmcnt(0)")
        a("s_barrier")
        a("s_add_u32 s27, s27, 1")
    a("s_cmp_lt_u32 s27, s22")
    a("s_cbranch_scc1 oproj_loop")
    a("s_nop 15")
    a("v_and_b32 v5, 31, v0")
    a("v_lshlrev_b32 v5, 11, v5")
    a("v_lshl_add_u32 v5, v12, 3, v5")
    a("s_lshl_b32 s30, s21, 1")
    a("s_add_u32 s30, s30, s18")
    a("s_lshl_b32 s30, s30, 16")
    a("s_add_u32 s30, s30, s25")
    a("s_lshl_b32 s31, s20, 7")
    a("s_add_u32 s30, s30, s31")
    a("s_lshl_b32 s31, s17, 6")
    a("s_add_u32 s30, s30, s31")
    for g in range(4):
        a(f"v_cvt_pk_bf16_f32 v{64+2*g}, v{48+4*g}, v{48+4*g+1}")
        a(f"v_cvt_pk_bf16_f32 v{64+2*g+1}, v{48+4*g+2}, v{48+4*g+3}")
    for g in range(4):
        a(f"buffer_store_dwordx2 v[{64+2*g}:{64+2*g+1}], v5, s[64:67], s30 offen offset:{g*16}")
    a.label("oproj_exit")
    a("s_endpgm")
    return name, 208

HEADER = """; generated
"""

def main():
    launches = []
    body = []
    a = Asm()
    nm, vg = gen_proj(a)
    body.append(a.text() + kernel_desc(nm, vg))
    launches.append(f"; @launch kernel=proj_kernel grid=(1632,1,1) block=(256,1,1) lds=65536")
    a = Asm()
    nm, vg = gen_attnB(a)
    gen_attnA(a)
    body.append(a.text() + kernel_desc(nm, vg))
    launches.append(f"; @launch kernel=attnb_kernel grid=(768,1,1) block=(256,1,1) lds=65536")
    a = Asm()
    nm, vg = gen_oproj(a)
    body.append(a.text() + kernel_desc(nm, vg))
    launches.append(f"; @launch kernel=oproj_kernel grid=(512,1,1) block=(256,1,1) lds=65536")
    out = "\n".join(launches) + "\n" + '.amdgcn_target "amdgcn-amd-amdhsa--gfx950"\n.text\n' + "\n".join(body)
    open(sys.argv[1] if len(sys.argv) > 1 else "out.s", "w").write(out)

main()
```
